```python
import torch

def _softmax(x, axis=-1):
    return torch.softmax(x, dim=axis)
def _gelu(x):
    return torch.nn.functional.gelu(x, approximate="tanh")
def _silu(x):
    return torch.nn.functional.silu(x)
def _sigmoid(x):
    return torch.sigmoid(x)
def _layernorm(x, axis=-1, eps=1e-5):
    m = x.mean(dim=axis, keepdim=True)
    v = x.var(dim=axis, keepdim=True, unbiased=False)
    return (x - m) / torch.sqrt(v + eps)
def _scatter_add(tgt, idx, src, axis=0):
    return tgt.clone().index_add_(axis, idx, src)
def _segment_sum(src, seg, n):
    out = torch.zeros((n,) + src.shape[1:], dtype=src.dtype)
    return out.index_add_(0, seg, src)
def _pad(x, pw):
    flat = tuple(v for pair in reversed(pw) for v in pair)
    return torch.nn.functional.pad(x, flat)

kernel_name = 'recurrent_scan__spectral_fnet__glu_gated_glu__prompt'

def setup_inputs():

    _w = (lambda a: (lambda t: t.to(torch.bfloat16) if t.is_floating_point() else t)(torch.as_tensor(a)))
    def _A_setup():
        B, S, D = 1, 2048, 576
        ns = torch.arange(S)[:, None] * torch.arange(S)[None, :]
        nd = torch.arange(D)[:, None] * torch.arange(D)[None, :]
        Ws_re = torch.cos(-2.0 * torch.pi * ns / S).to(float)
        Ws_im = torch.sin(-2.0 * torch.pi * ns / S).to(float)
        Wd_re = torch.cos(-2.0 * torch.pi * nd / D).to(float)
        Wd_im = torch.sin(-2.0 * torch.pi * nd / D).to(float)
        return {
            "x": _w((lambda *s: torch.randn(*s, dtype=torch.bfloat16) * 0.05)(B, S, D)),
            "dft_seq_re": _w(Ws_re),
            "dft_seq_im": _w(Ws_im),
            "dft_hid_re": _w(Wd_re),
            "dft_hid_im": _w(Wd_im),
        }
    _A_in = _A_setup()

    def _B_setup():
        B, S, D, F = 1, 2048, 576, 4608
        return {
            "x": _w((lambda *s: torch.randn(*s, dtype=torch.bfloat16) * 0.05)(B, S, D)),
            "w_gate": _w((lambda *s: torch.randn(*s, dtype=torch.bfloat16) * 0.05)(D, F)),
            "w_up": _w((lambda *s: torch.randn(*s, dtype=torch.bfloat16) * 0.05)(D, F)),
            "w_down": _w((lambda *s: torch.randn(*s, dtype=torch.bfloat16) * 0.05)(F, D)),
        }
    _B_in = _B_setup()

    return {
        "A_x": _A_in["x"],
        "A_dft_seq_re": _A_in["dft_seq_re"],
        "A_dft_seq_im": _A_in["dft_seq_im"],
        "A_dft_hid_re": _A_in["dft_hid_re"],
        "A_dft_hid_im": _A_in["dft_hid_im"],
        "B_x": _B_in["x"],
        "B_w_gate": _B_in["w_gate"],
        "B_w_up": _B_in["w_up"],
        "B_w_down": _B_in["w_down"],
    }

def reference(A_x, A_dft_seq_re, A_dft_seq_im, A_dft_hid_re, A_dft_hid_im, B_x, B_w_gate, B_w_up, B_w_down):
    def _A_ref(x, dft_seq_re, dft_seq_im, dft_hid_re, dft_hid_im):
        a = torch.einsum("bsd,ed->bse", x, dft_hid_re)
        b = torch.einsum("bsd,ed->bse", x, dft_hid_im)
        y = torch.einsum("ts,bse->bte", dft_seq_re, a) - torch.einsum("ts,bse->bte", dft_seq_im, b)
        return y

    def _B_ref(x, w_gate, w_up, w_down):
        g = torch.einsum("bsd,df->bsf", x, w_gate)
        u = torch.einsum("bsd,df->bsf", x, w_up)
        h = _sigmoid(g) * u
        return torch.einsum("bsf,fd->bsd", h, w_down)

    x = A_x
    xn = _layernorm(x, axis=-1)
    s = _A_ref(xn, A_dft_seq_re, A_dft_seq_im, A_dft_hid_re, A_dft_hid_im)
    g = _silu(_B_ref(xn, B_w_gate, B_w_up, B_w_down))
    return x + s * g
```

```python
import struct
import sys

NAME = "recurrent_scan__spectral_fnet__glu_gated_glu__prompt"
S, D, F = 2048, 576, 4608

WS_XN = 0
WS_AT = 4 << 20
WS_BT = 8 << 20
WS_H = 16 << 20
WS_P = 40 << 20
P_STRIDE = 8 << 20

KA_X, KA_CR, KA_CI, KA_WDR, KA_WDI, KA_BX, KA_WG, KA_WU, KA_WD, KA_OUT, KA_DBG, KA_WS = [8 * i for i in range(12)]


def f2u(x):
    return struct.unpack("<I", struct.pack("<f", x))[0]


class Asm:
    def __init__(self):
        self.lines = []
        self.uid = 0

    def __call__(self, s):
        self.lines.append("    " + s)

    def label(self, s):
        self.lines.append(s + ":")

    def c(self, s):
        self.lines.append("    ; " + s)

    def raw(self, s):
        self.lines.append(s)

    def newlabel(self, p="L"):
        self.uid += 1
        return "%s_%d" % (p, self.uid)


def kernel_header(a, name):
    a.raw(".globl %s" % name)
    a.raw(".p2align 8")
    a.raw(".type %s,@function" % name)
    a.label(name)


def kernel_desc(a, name, vgpr, sgpr=102):
    a.raw(".p2align 6")
    a.raw(".amdhsa_kernel %s" % name)
    a.raw("  .amdhsa_next_free_vgpr %d" % vgpr)
    a.raw("  .amdhsa_next_free_sgpr %d" % sgpr)
    a.raw("  .amdhsa_accum_offset %d" % (((vgpr + 3) // 4) * 4))
    a.raw("  .amdhsa_group_segment_fixed_size 0")
    a.raw("  .amdhsa_kernarg_size 96")
    a.raw("  .amdhsa_user_sgpr_count 2")
    a.raw("  .amdhsa_user_sgpr_kernarg_segment_ptr 1")
    a.raw("  .amdhsa_system_sgpr_workgroup_id_x 1")
    a.raw(".end_amdhsa_kernel")


def srd(a, d, blo, off, size):
    if off:
        a("s_add_u32 s%d, s%d, 0x%x" % (d, blo, off))
        a("s_addc_u32 s%d, s%d, 0" % (d + 1, blo + 1))
    else:
        a("s_mov_b32 s%d, s%d" % (d, blo))
        a("s_mov_b32 s%d, s%d" % (d + 1, blo + 1))
    a("s_and_b32 s%d, s%d, 0xffff" % (d + 1, d + 1))
    a("s_mov_b32 s%d, 0x%x" % (d + 2, size))
    a("s_mov_b32 s%d, 0x00020000" % (d + 3))


def gen_k0(a):
    name = "ln_kernel"
    kernel_header(a, name)
    a("s_cmp_ge_u32 s2, 512")
    a("s_cbranch_scc1 ln_done")
    a("s_load_dwordx2 s[4:5], s[0:1], %d" % KA_X)
    a("s_load_dwordx2 s[6:7], s[0:1], %d" % KA_WS)
    a("v_lshrrev_b32 v1, 6, v0")
    a("v_and_b32 v2, 63, v0")
    a("s_lshl_b32 s3, s2, 2")
    a("v_add_u32 v1, s3, v1")
    a("s_movk_i32 s3, 1152")
    a("v_mul_lo_u32 v3, s3, v1")
    a("v_lshl_add_u32 v3, v2, 2, v3")
    a("s_waitcnt lgkmcnt(0)")
    srd(a, 8, 4, 0, S * D * 2)
    srd(a, 12, 6, WS_XN, S * D * 2)
    a("v_mov_b32 v14, 0")
    for j in range(4):
        a("buffer_load_dword v%d, v3, s[8:11], 0 offen offset:%d" % (10 + j, 256 * j))
    a("v_cmp_gt_u32 vcc, 32, v2")
    a("s_and_saveexec_b64 s[16:17], vcc")
    a("buffer_load_dword v14, v3, s[8:11], 0 offen offset:1024")
    a("s_mov_b64 exec, s[16:17]")
    a("s_waitcnt vmcnt(0)")
    for j in range(5):
        a("v_lshlrev_b32 v%d, 16, v%d" % (20 + 2 * j, 10 + j))
        a("v_and_b32 v%d, 0xffff0000, v%d" % (21 + 2 * j, 10 + j))
    a("v_add_f32 v30, v20, v21")
    for j in range(2, 10):
        a("v_add_f32 v30, v30, v%d" % (20 + j))

    def wave_sum(v):
        for off in (0x041F, 0x081F, 0x101F, 0x201F, 0x401F):
            a("ds_swizzle_b32 v31, v%d offset:0x%x" % (v, off))
            a("s_waitcnt lgkmcnt(0)")
            a("v_add_f32 v%d, v%d, v31" % (v, v))
        a("s_nop 0")
        a("v_readlane_b32 s18, v%d, 0" % v)
        a("v_readlane_b32 s19, v%d, 32" % v)
        a("s_nop 1")
        a("v_mov_b32 v%d, s18" % v)
        a("v_add_f32 v%d, s19, v%d" % (v, v))

    wave_sum(30)
    a("v_mul_f32 v30, 0x%08x, v30" % f2u(1.0 / 576))
    a("v_cmp_gt_u32 vcc, 32, v2")
    for j in range(10):
        a("v_sub_f32 v%d, v%d, v30" % (40 + j, 20 + j))
    a("v_cndmask_b32 v48, 0, v48, vcc")
    a("v_cndmask_b32 v49, 0, v49, vcc")
    a("v_mul_f32 v32, v40, v40")
    for j in range(1, 10):
        a("v_fmac_f32 v32, v%d, v%d" % (40 + j, 40 + j))
    wave_sum(32)
    a("v_mul_f32 v32, 0x%08x, v32" % f2u(1.0 / 576))
    a("v_cvt_pk_bf16_f32 v33, v30, v32")
    a("v_lshlrev_b32 v34, 16, v33")
    a("v_and_b32 v35, 0xffff0000, v33")
    a("v_add_f32 v35, 0x%08x, v35" % f2u(1e-5))
    a("v_cvt_pk_bf16_f32 v35, v35, v35")
    a("v_lshlrev_b32 v35, 16, v35")
    a("v_sqrt_f32 v35, v35")
    a("s_nop 0")
    a("v_cvt_pk_bf16_f32 v35, v35, v35")
    a("v_lshlrev_b32 v35, 16, v35")
    a("v_rcp_f32 v36, v35")
    for j in range(10):
        a("v_sub_f32 v%d, v%d, v34" % (40 + j, 20 + j))
    for j in range(5):
        a("v_cvt_pk_bf16_f32 v%d, v%d, v%d" % (50 + j, 40 + 2 * j, 41 + 2 * j))
    for j in range(5):
        a("v_lshlrev_b32 v%d, 16, v%d" % (40 + 2 * j, 50 + j))
        a("v_and_b32 v%d, 0xffff0000, v%d" % (41 + 2 * j, 50 + j))
    for j in range(10):
        a("v_mul_f32 v%d, v%d, v36" % (60 + j, 40 + j))
    for j in range(10):
        a("v_fma_f32 v%d, -v%d, v35, v%d" % (70 + j, 60 + j, 40 + j))
    for j in range(10):
        a("v_fmac_f32 v%d, v%d, v36" % (60 + j, 70 + j))
    for j in range(5):
        a("v_cvt_pk_bf16_f32 v%d, v%d, v%d" % (50 + j, 60 + 2 * j, 61 + 2 * j))
    for j in range(4):
        a("buffer_store_dword v%d, v3, s[12:15], 0 offen offset:%d" % (50 + j, 256 * j))
    a("v_cmp_gt_u32 vcc, 32, v2")
    a("s_and_saveexec_b64 s[16:17], vcc")
    a("buffer_store_dword v54, v3, s[12:15], 0 offen offset:1024")
    a("s_mov_b64 exec, s[16:17]")
    a("s_waitcnt vmcnt(0)")
    a.label("ln_done")
    a("s_endpgm")
    return name, 80


S_SRDA, S_SRDB, S_SRDO = 8, 12, 16
S_AOFF, S_BOFF = 20, 24
S_M0A, S_M0B, S_W, S_CNT = 30, 31, 32, 33
S_T = 34
V_LANE, V_ADMA, V_BDMA, V_ARD, V_BRD = 10, 11, 12, 14, 16
V_ACC = 32


class Cfg:
    pass


def dma_issue(a, cfg, stage):
    stg = stage * cfg.stage_bytes
    for j in range(4):
        a("s_add_u32 m0, s%d, %d" % (S_M0A, stg + j * 1024))
        a("s_nop 0")
        a("buffer_load_dwordx4 v%d, s[%d:%d], s%d offen lds" % (V_ADMA, S_SRDA, S_SRDA + 3, S_AOFF + j))
    for j in range(cfg.nb):
        a("s_add_u32 m0, s%d, %d" % (S_M0B, stg + j * 1024))
        a("s_nop 0")
        v = V_BDMA + (j & 1 if cfg.btype == 'tr' else 0)
        a("buffer_load_dwordx4 v%d, s[%d:%d], s%d offen lds" % (v, S_SRDB, S_SRDB + 3, S_BOFF + j))
    for j in range(4):
        a("s_add_u32 s%d, s%d, 128" % (S_AOFF + j, S_AOFF + j))
    for j in range(cfg.nb):
        a("s_add_u32 s%d, s%d, %d" % (S_BOFF + j, S_BOFF + j, cfg.bstep))


def stage_compute(a, cfg, stage):
    stg = stage * cfg.stage_bytes
    nbf = cfg.nbf
    vfrag = V_ACC + 16 * nbf
    for kk in range(2):
        fa = vfrag + kk * (16 + 4 * nbf)
        fb = fa + 16
        for mt in range(4):
            a("ds_read_b128 v[%d:%d], v%d offset:%d" % (fa + 4 * mt, fa + 4 * mt + 3, V_ARD + kk, stg + mt * 2048))
        for nf in range(nbf):
            if cfg.btype == 'tr':
                for h in range(2):
                    a("ds_read_b64_tr_b16 v[%d:%d], v%d offset:%d" % (
                        fb + 4 * nf + 2 * h, fb + 4 * nf + 2 * h + 1,
                        V_BRD + cfg.brd_idx[nf], stg + cfg.brd_off[nf] + kk * 4096 + h * 512))
            else:
                a("ds_read_b128 v[%d:%d], v%d offset:%d" % (fb + 4 * nf, fb + 4 * nf + 3, V_BRD + kk,
                                                            stg + cfg.brd_off[nf]))
    nreads = 4 + (2 * nbf if cfg.btype == 'tr' else nbf)
    nreads = min(nreads, 15)
    for kk in range(2):
        a("s_waitcnt lgkmcnt(%d)" % (nreads if kk == 0 else 0))
        fa = vfrag + kk * (16 + 4 * nbf)
        fb = fa + 16
        for mt in range(4):
            for nf in range(nbf):
                acc = V_ACC + 4 * (mt * nbf + nf)
                A = "v[%d:%d]" % (fa + 4 * mt, fa + 4 * mt + 3)
                B = "v[%d:%d]" % (fb + 4 * nf, fb + 4 * nf + 3)
                if cfg.swap:
                    A, B = B, A
                a("v_mfma_f32_16x16x32_bf16 v[%d:%d], %s, %s, v[%d:%d]" % (acc, acc + 3, A, B, acc, acc + 3))


def mainloop(a, cfg, niter):
    for i in range(cfg.nbf * 16):
        a("v_mov_b32 v%d, 0" % (V_ACC + i))
    dma_issue(a, cfg, 0)
    it = 0
    if niter > 3:
        npairs = (niter - 1) // 2
        a("s_mov_b32 s%d, 0" % S_CNT)
        lab = a.newlabel("kloop")
        a.label(lab)
        for st in range(2):
            a("s_waitcnt vmcnt(0)")
            a("s_barrier")
            dma_issue(a, cfg, st ^ 1)
            stage_compute(a, cfg, st)
        a("s_add_u32 s%d, s%d, 1" % (S_CNT, S_CNT))
        a("s_cmp_lt_u32 s%d, %d" % (S_CNT, npairs))
        a("s_cbranch_scc1 %s" % lab)
        it = 2 * npairs
    while it < niter:
        st = it & 1
        a("s_waitcnt vmcnt(0)")
        a("s_barrier")
        if it + 1 < niter:
            dma_issue(a, cfg, st ^ 1)
        stage_compute(a, cfg, st)
        it += 1
    a("s_nop 7")
    a("s_nop 7")


def lane_setup_common(a):
    a("v_lshrrev_b32 v1, 6, v0")
    a("v_and_b32 v%d, 63, v0" % V_LANE)
    a("v_readfirstlane_b32 s%d, v1" % S_W)
    L = V_LANE
    a("v_and_b32 v1, 15, v%d" % L)
    a("v_lshlrev_b32 v1, 7, v1")
    a("v_lshrrev_b32 v2, 4, v%d" % L)
    a("v_and_b32 v3, 7, v%d" % L)
    a("v_xor_b32 v2, v2, v3")
    a("v_lshl_add_u32 v9, v2, 4, v1")
    a("s_lshr_b32 s%d, s%d, 1" % (S_T, S_W))
    a("s_lshl_b32 s%d, s%d, 13" % (S_T, S_T))
    a("v_add_u32 v%d, s%d, v9" % (V_ARD, S_T))
    a("v_xor_b32 v%d, 64, v%d" % (V_ARD + 1, V_ARD))
    a("s_lshl_b32 s%d, s%d, 12" % (S_M0A, S_W))


def a_dma_setup(a, a_stride, s_mrow, kbyte0):
    L = V_LANE
    a("v_lshrrev_b32 v1, 3, v%d" % L)
    a("v_and_b32 v2, 7, v%d" % L)
    a("v_xor_b32 v2, v2, v1")
    a("v_lshlrev_b32 v2, 4, v2")
    a("s_lshl_b32 s%d, s%d, 5" % (S_T, S_W))
    a("v_add_u32 v3, s%d, v1" % S_T)
    a("s_mov_b32 s%d, %d" % (S_T, a_stride))
    a("v_mul_lo_u32 v3, s%d, v3" % S_T)
    a("v_add_u32 v%d, v3, v2" % V_ADMA)
    a("s_mul_i32 s%d, s%d, %d" % (S_T, s_mrow, a_stride))
    for j in range(4):
        a("s_add_u32 s%d, s%d, %d" % (S_AOFF + j, S_T, 8 * j * a_stride + kbyte0))


def b_kc_setup(a, cfg, b_stride, s_brow, kbyte0, wave_rd_shift_rows):
    a("s_mov_b32 s%d, %d" % (S_T, b_stride))
    a("v_mul_lo_u32 v3, s%d, v1" % S_T)
    a("v_add_u32 v%d, v3, v2" % V_BDMA)
    a("s_mul_i32 s%d, s%d, %d" % (S_T, s_brow, b_stride))
    for j in range(cfg.nb):
        a("s_add_u32 s%d, s%d, %d" % (S_BOFF + j, S_T, 8 * j * b_stride + kbyte0))
    a("s_and_b32 s%d, s%d, 1" % (S_T, S_W))
    a("s_mul_i32 s%d, s%d, %d" % (S_T, S_T, wave_rd_shift_rows * 128))
    a("s_add_u32 s%d, s%d, 16384" % (S_T, S_T))
    a("v_add_u32 v%d, s%d, v9" % (V_BRD, S_T))
    a("v_xor_b32 v%d, 64, v%d" % (V_BRD + 1, V_BRD))
    a("s_mul_i32 s%d, s%d, %d" % (S_M0B, S_W, cfg.nb * 1024))
    a("s_add_u32 s%d, s%d, 16384" % (S_M0B, S_M0B))


def b_tr_lane_setup(a, cfg, b_stride):
    L = V_LANE
    a("v_lshrrev_b32 v1, 3, v%d" % L)
    a("s_mov_b32 s%d, %d" % (S_T, b_stride))
    a("v_mul_lo_u32 v3, s%d, v1" % S_T)
    a("v_and_b32 v4, 2, v1")
    a("v_and_b32 v5, 7, v%d" % L)
    a("v_xor_b32 v5, v5, v4")
    a("v_lshl_add_u32 v%d, v5, 4, v3" % V_BDMA)
    a("v_xor_b32 v%d, 64, v%d" % (V_BDMA + 1, V_BDMA))
    a("v_and_b32 v4, 15, v%d" % L)
    a("v_lshrrev_b32 v5, 4, v%d" % L)
    a("v_lshrrev_b32 v6, 2, v4")
    a("v_lshl_add_u32 v7, v5, 3, v6")
    a("v_lshlrev_b32 v7, 7, v7")
    a("v_and_b32 v6, 2, v6")
    a("v_and_b32 v5, 1, v5")
    a("v_lshl_or_b32 v6, v5, 2, v6")
    a("v_bfe_u32 v5, v4, 1, 1")
    a("v_xor_b32 v5, v5, v6")
    a("v_lshl_add_u32 v7, v5, 4, v7")
    a("v_and_b32 v5, 1, v4")
    a("v_lshl_add_u32 v8, v5, 3, v7")
    a("v_add_u32 v8, 0x4000, v8")
    a("s_mul_i32 s%d, s%d, %d" % (S_M0B, S_W, cfg.nb * 1024))
    a("s_add_u32 s%d, s%d, 16384" % (S_M0B, S_M0B))


def bf16_round_pair(a, dst, x0, x1):
    a("v_cvt_pk_bf16_f32 v%d, v%d, v%d" % (dst, x0, x1))


def gen_k1(a):
    name = "gemm1_kernel"
    kernel_header(a, name)
    a("s_cmp_ge_u32 s2, 1296")
    a("s_cbranch_scc1 k1_done")
    a("s_load_dwordx2 s[4:5], s[0:1], %d" % KA_WS)
    a("s_load_dwordx4 s[40:43], s[0:1], %d" % KA_WDR)
    a("s_load_dwordx4 s[44:47], s[0:1], %d" % KA_WG)
    lane_setup_common(a)
    a("s_waitcnt lgkmcnt(0)")
    srd(a, S_SRDA, 4, WS_XN, S * D * 2)
    a("s_cmp_ge_u32 s2, 144")
    a("s_cbranch_scc1 k1_gu")

    cfg = Cfg()
    cfg.stage_bytes = 32768
    cfg.nb = 4
    cfg.nbf = 4
    cfg.btype = 'kc'
    cfg.bstep = 128
    cfg.swap = False
    cfg.brd_off = [(64 * ri + 16 * nt) * 128 for ri in range(2) for nt in range(2)]
    a("s_and_b32 s36, s2, 15")
    a("s_lshl_b32 s36, s36, 7")
    a("s_lshr_b32 s37, s2, 4")
    a("s_lshl_b32 s37, s37, 6")
    a("s_cmp_ge_u32 s%d, 2" % S_W)
    a("s_cselect_b32 s6, s42, s40")
    a("s_cselect_b32 s7, s43, s41")
    srd(a, S_SRDB, 6, 0, D * D * 2)
    a_dma_setup(a, 1152, 36, 0)
    a("s_and_b32 s38, s%d, 1" % S_W)
    a("s_lshl_b32 s38, s38, 5")
    a("s_add_u32 s38, s38, s37")
    b_kc_setup(a, cfg, 1152, 38, 0, 32)
    mainloop(a, cfg, 9)
    srd(a, S_SRDO, 4, WS_AT, (WS_BT - WS_AT) + S * D * 2)
    L = V_LANE
    a("v_and_b32 v1, 15, v%d" % L)
    a("s_and_b32 s38, s%d, 1" % S_W)
    a("s_lshl_b32 s38, s38, 5")
    a("s_add_u32 s38, s38, s37")
    a("v_add_u32 v1, s38, v1")
    a("v_lshlrev_b32 v1, 12, v1")
    a("v_lshrrev_b32 v2, 4, v%d" % L)
    a("v_lshlrev_b32 v2, 3, v2")
    a("s_lshr_b32 s39, s%d, 1" % S_W)
    a("s_lshl_b32 s39, s39, 6")
    a("s_add_u32 s39, s39, s36")
    a("s_lshl_b32 s39, s39, 1")
    a("v_add3_u32 v1, v1, v2, s39")
    for mt in range(4):
        for ri in range(2):
            for nt in range(2):
                acc = V_ACC + 4 * (mt * 4 + ri * 2 + nt)
                a("v_cvt_pk_bf16_f32 v%d, v%d, v%d" % (100, acc, acc + 1))
                a("v_cvt_pk_bf16_f32 v%d, v%d, v%d" % (101, acc + 2, acc + 3))
                a("s_mov_b32 s%d, %d" % (S_T, ri * (WS_BT - WS_AT) + nt * 16 * 4096 + mt * 32))
                a("buffer_store_dwordx2 v[100:101], v1, s[%d:%d], s%d offen" % (S_SRDO, S_SRDO + 3, S_T))
                a("s_nop 0")
    a("s_waitcnt vmcnt(0)")
    a("s_endpgm")

    a.label("k1_gu")
    cfg = Cfg()
    cfg.stage_bytes = 32768
    cfg.nb = 4
    cfg.nbf = 4
    cfg.btype = 'tr'
    cfg.bstep = 64 * 9216
    cfg.swap = True
    cfg.brd_idx = [nt for gu in range(2) for nt in range(2)]
    cfg.brd_off = [gu * 8192 for gu in range(2) for nt in range(2)]
    a("s_sub_u32 s34, s2, 144")
    a("s_and_b32 s35, s34, 7")
    a("s_lshr_b32 s34, s34, 3")
    a("s_mul_i32 s36, s34, 7282")
    a("s_lshr_b32 s36, s36, 16")
    a("s_mul_i32 s37, s36, 9")
    a("s_sub_u32 s37, s34, s37")
    a("s_lshl_b32 s37, s37, 3")
    a("s_add_u32 s37, s37, s35")
    a("s_lshl_b32 s36, s36, 7")
    a("s_lshl_b32 s37, s37, 6")
    a("s_cmp_ge_u32 s%d, 2" % S_W)
    a("s_cselect_b32 s6, s46, s44")
    a("s_cselect_b32 s7, s47, s45")
    srd(a, S_SRDB, 6, 0, D * F * 2)
    a_dma_setup(a, 1152, 36, 0)
    b_tr_lane_setup(a, cfg, 9216)
    a("s_and_b32 s38, s%d, 1" % S_W)
    a("s_mul_i32 s38, s38, %d" % (32 * 9216))
    a("s_lshl_b32 s39, s37, 1")
    a("s_add_u32 s38, s38, s39")
    for j in range(4):
        a("s_add_u32 s%d, s38, %d" % (S_BOFF + j, 8 * j * 9216))
    a("s_and_b32 s38, s%d, 1" % S_W)
    a("s_lshl_b32 s38, s38, 6")
    a("v_xor_b32 v%d, s38, v8" % V_BRD)
    a("v_xor_b32 v%d, 32, v%d" % (V_BRD + 1, V_BRD))
    mainloop(a, cfg, 9)
    srd(a, S_SRDO, 4, WS_H, S * F * 2)
    L = V_LANE
    a("v_and_b32 v1, 15, v%d" % L)
    a("s_lshr_b32 s39, s%d, 1" % S_W)
    a("s_lshl_b32 s39, s39, 6")
    a("s_add_u32 s39, s39, s36")
    a("v_add_u32 v1, s39, v1")
    a("s_movk_i32 s39, 9216")
    a("v_mul_lo_u32 v1, s39, v1")
    a("v_lshrrev_b32 v2, 4, v%d" % L)
    a("v_lshlrev_b32 v2, 3, v2")
    a("s_and_b32 s38, s%d, 1" % S_W)
    a("s_lshl_b32 s38, s38, 5")
    a("s_add_u32 s38, s38, s37")
    a("s_lshl_b32 s38, s38, 1")
    a("v_add3_u32 v1, v1, v2, s38")
    T = 100
    for mt in range(4):
        for nt in range(2):
            g = V_ACC + 4 * (mt * 4 + nt)
            u = V_ACC + 4 * (mt * 4 + 2 + nt)
            a("v_cvt_pk_bf16_f32 v%d, v%d, v%d" % (T, g, g + 1))
            a("v_cvt_pk_bf16_f32 v%d, v%d, v%d" % (T + 1, g + 2, g + 3))
            a("v_cvt_pk_bf16_f32 v%d, v%d, v%d" % (T + 2, u, u + 1))
            a("v_cvt_pk_bf16_f32 v%d, v%d, v%d" % (T + 3, u + 2, u + 3))
            a("v_lshlrev_b32 v%d, 16, v%d" % (T + 4, T))
            a("v_and_b32 v%d, 0xffff0000, v%d" % (T + 5, T))
            a("v_lshlrev_b32 v%d, 16, v%d" % (T + 6, T + 1))
            a("v_and_b32 v%d, 0xffff0000, v%d" % (T + 7, T + 1))
            for r in range(4):
                a("v_mul_f32 v%d, 0x%08x, v%d" % (T + 4 + r, f2u(-1.4426950408889634), T + 4 + r))
            for r in range(4):
                a("v_exp_f32 v%d, v%d" % (T + 4 + r, T + 4 + r))
            for r in range(4):
                a("v_add_f32 v%d, 1.0, v%d" % (T + 4 + r, T + 4 + r))
            for r in range(4):
                a("v_rcp_f32 v%d, v%d" % (T + 4 + r, T + 4 + r))
            a("s_nop 0")
            a("v_cvt_pk_bf16_f32 v%d, v%d, v%d" % (T, T + 4, T + 5))
            a("v_cvt_pk_bf16_f32 v%d, v%d, v%d" % (T + 1, T + 6, T + 7))
            a("v_lshlrev_b32 v%d, 16, v%d" % (T + 4, T))
            a("v_and_b32 v%d, 0xffff0000, v%d" % (T + 5, T))
            a("v_lshlrev_b32 v%d, 16, v%d" % (T + 6, T + 1))
            a("v_and_b32 v%d, 0xffff0000, v%d" % (T + 7, T + 1))
            a("v_lshlrev_b32 v%d, 16, v%d" % (T + 8, T + 2))
            a("v_and_b32 v%d, 0xffff0000, v%d" % (T + 9, T + 2))
            a("v_lshlrev_b32 v%d, 16, v%d" % (T + 10, T + 3))
            a("v_and_b32 v%d, 0xffff0000, v%d" % (T + 11, T + 3))
            for r in range(4):
                a("v_mul_f32 v%d, v%d, v%d" % (T + 4 + r, T + 4 + r, T + 8 + r))
            a("v_cvt_pk_bf16_f32 v%d, v%d, v%d" % (T + 12, T + 4, T + 5))
            a("v_cvt_pk_bf16_f32 v%d, v%d, v%d" % (T + 13, T + 6, T + 7))
            a("s_mov_b32 s%d, %d" % (S_T, mt * 16 * 9216 + nt * 32))
            a("buffer_store_dwordx2 v[%d:%d], v1, s[%d:%d], s%d offen" % (T + 12, T + 13, S_SRDO, S_SRDO + 3, S_T))
    a("s_waitcnt vmcnt(0)")
    a.label("k1_done")
    a("s_endpgm")
    return name, 160


def gen_k2(a):
    name = "gemm2_kernel"
    kernel_header(a, name)
    a("s_cmp_ge_u32 s2, 240")
    a("s_cbranch_scc1 k2_done")
    a("s_load_dwordx2 s[4:5], s[0:1], %d" % KA_WS)
    a("s_load_dwordx4 s[40:43], s[0:1], %d" % KA_CR)
    a("s_load_dwordx2 s[44:45], s[0:1], %d" % KA_WD)
    lane_setup_common(a)
    a("s_and_b32 s34, s2, 7")
    a("s_lshr_b32 s35, s2, 3")
    a("s_mul_i32 s36, s35, 21846")
    a("s_lshr_b32 s36, s36, 16")
    a("s_mul_i32 s37, s36, 3")
    a("s_sub_u32 s37, s35, s37")
    a("s_mul_i32 s37, s37, 192")
    a("s_mul_i32 s34, s34, 10")
    a("s_add_u32 s34, s34, s36")
    a("s_and_b32 s36, s34, 15")
    a("s_lshl_b32 s36, s36, 7")
    a("s_lshr_b32 s48, s34, 4")
    a("s_waitcnt lgkmcnt(0)")
    a("s_cmp_ge_u32 s48, 2")
    a("s_cbranch_scc1 k2_dn")

    cfg = Cfg()
    cfg.stage_bytes = 40960
    cfg.nb = 6
    cfg.nbf = 6
    cfg.btype = 'kc'
    cfg.bstep = 128
    cfg.swap = True
    cfg.brd_off = [nt * 2048 for nt in range(6)]
    a("s_cmp_eq_u32 s48, 1")
    a("s_cselect_b32 s6, s42, s40")
    a("s_cselect_b32 s7, s43, s41")
    srd(a, S_SRDA, 6, 0, S * S * 2)
    a("s_mul_i32 s38, s48, %d" % (WS_BT - WS_AT))
    a("s_add_u32 s6, s4, s38")
    a("s_addc_u32 s7, s5, 0")
    srd(a, S_SRDB, 6, WS_AT, S * D * 2)
    a_dma_setup(a, 4096, 36, 0)
    a("s_mul_i32 s38, s%d, 48" % S_W)
    a("s_add_u32 s38, s38, s37")
    b_kc_setup(a, cfg, 4096, 38, 0, 96)
    mainloop(a, cfg, 32)
    a("s_branch k2_store")

    a.label("k2_dn")
    cfg = Cfg()
    cfg.stage_bytes = 40960
    cfg.nb = 6
    cfg.nbf = 6
    cfg.btype = 'tr'
    cfg.bstep = 64 * 1152
    cfg.swap = True
    cfg.brd_idx = list(range(6))
    cfg.brd_off = [0] * 6
    srd(a, S_SRDA, 4, WS_H, S * F * 2)
    srd(a, S_SRDB, 44, 0, F * D * 2)
    a("s_sub_u32 s49, s48, 2")
    a("s_mul_i32 s49, s49, 1536")
    a_dma_setup(a, 9216, 36, 0)
    a("s_lshl_b32 s38, s49, 1")
    for j in range(4):
        a("s_add_u32 s%d, s%d, s38" % (S_AOFF + j, S_AOFF + j))
    b_tr_lane_setup(a, cfg, 1152)
    for j in range(6):
        a("s_mul_i32 s38, s%d, 6" % S_W)
        a("s_add_u32 s38, s38, %d" % j)
        a("s_lshr_b32 s39, s38, 3")
        a("s_and_b32 s38, s38, 7")
        a("s_lshl_b32 s38, s38, 3")
        a("s_add_u32 s38, s38, s49")
        a("s_mul_i32 s38, s38, 1152")
        a("s_lshl_b32 s39, s39, 6")
        a("s_add_u32 s39, s39, s37")
        a("s_lshl_b32 s39, s39, 1")
        a("s_add_u32 s%d, s38, s39" % (S_BOFF + j))
    for nt in range(6):
        a("s_and_b32 s38, s%d, 1" % S_W)
        a("s_mul_i32 s38, s38, 96")
        a("s_add_u32 s38, s38, %d" % (16 * nt))
        a("s_lshr_b32 s39, s38, 6")
        a("s_lshl_b32 s39, s39, 13")
        a("s_and_b32 s38, s38, 63")
        a("s_lshl_b32 s38, s38, 1")
        a("v_xor_b32 v%d, s38, v8" % (V_BRD + nt))
        a("v_add_u32 v%d, s39, v%d" % (V_BRD + nt, V_BRD + nt))
    mainloop(a, cfg, 24)

    a.label("k2_store")
    a("s_mul_i32 s38, s48, %d" % P_STRIDE)
    a("s_add_u32 s6, s4, s38")
    a("s_addc_u32 s7, s5, 0")
    srd(a, S_SRDO, 6, WS_P, S * D * 4)
    L = V_LANE
    a("v_and_b32 v1, 15, v%d" % L)
    a("s_lshr_b32 s39, s%d, 1" % S_W)
    a("s_lshl_b32 s39, s39, 6")
    a("s_add_u32 s39, s39, s36")
    a("v_add_u32 v1, s39, v1")
    a("s_movk_i32 s39, 2304")
    a("v_mul_lo_u32 v1, s39, v1")
    a("v_lshrrev_b32 v2, 4, v%d" % L)
    a("v_lshlrev_b32 v2, 4, v2")
    a("s_and_b32 s38, s%d, 1" % S_W)
    a("s_mul_i32 s38, s38, 96")
    a("s_add_u32 s38, s38, s37")
    a("s_lshl_b32 s38, s38, 2")
    a("v_add3_u32 v1, v1, v2, s38")
    for mt in range(4):
        for nt in range(6):
            acc = V_ACC + 4 * (mt * 6 + nt)
            a("s_mov_b32 s%d, %d" % (S_T, mt * 16 * 2304 + nt * 64))
            a("buffer_store_dwordx4 v[%d:%d], v1, s[%d:%d], s%d offen" % (acc, acc + 3, S_SRDO, S_SRDO + 3, S_T))
    a("s_waitcnt vmcnt(0)")
    a.label("k2_done")
    a("s_endpgm")
    return name, 208


def gen_k3(a):
    name = "final_kernel"
    kernel_header(a, name)
    a("s_cmp_ge_u32 s2, 1152")
    a("s_cbranch_scc1 k3_done")
    a("s_load_dwordx2 s[4:5], s[0:1], %d" % KA_WS)
    a("s_load_dwordx2 s[6:7], s[0:1], %d" % KA_X)
    a("s_load_dwordx2 s[20:21], s[0:1], %d" % KA_OUT)
    a("s_lshl_b32 s3, s2, 8")
    a("v_add_u32 v1, s3, v0")
    a("v_lshlrev_b32 v2, 4, v1")
    a("v_lshlrev_b32 v3, 3, v1")
    a("s_waitcnt lgkmcnt(0)")
    srd(a, 8, 4, WS_P, 4 * P_STRIDE + S * D * 4)
    srd(a, 12, 6, 0, S * D * 2)
    srd(a, 16, 20, 0, S * D * 2)
    for p in range(5):
        a("s_mov_b32 s22, %d" % (p * P_STRIDE))
        a("buffer_load_dwordx4 v[%d:%d], v2, s[8:11], s22 offen" % (8 + 4 * p, 11 + 4 * p))
    a("buffer_load_dwordx2 v[4:5], v3, s[12:15], 0 offen")
    a("s_waitcnt vmcnt(0)")
    a("v_cvt_pk_bf16_f32 v30, v8, v9")
    a("v_cvt_pk_bf16_f32 v31, v10, v11")
    a("v_cvt_pk_bf16_f32 v32, v12, v13")
    a("v_cvt_pk_bf16_f32 v33, v14, v15")
    for h in range(2):
        a("v_lshlrev_b32 v%d, 16, v%d" % (34 + 2 * h, 30 + h))
        a("v_and_b32 v%d, 0xffff0000, v%d" % (35 + 2 * h, 30 + h))
        a("v_lshlrev_b32 v%d, 16, v%d" % (38 + 2 * h, 32 + h))
        a("v_and_b32 v%d, 0xffff0000, v%d" % (39 + 2 * h, 32 + h))
    for r in range(4):
        a("v_sub_f32 v%d, v%d, v%d" % (34 + r, 34 + r, 38 + r))
    a("v_cvt_pk_bf16_f32 v30, v34, v35")
    a("v_cvt_pk_bf16_f32 v31, v36, v37")
    for h in range(2):
        a("v_lshlrev_b32 v%d, 16, v%d" % (34 + 2 * h, 30 + h))
        a("v_and_b32 v%d, 0xffff0000, v%d" % (35 + 2 * h, 30 + h))
    for r in range(4):
        a("v_add_f32 v%d, v%d, v%d" % (16 + r, 16 + r, 20 + r))
    for r in range(4):
        a("v_add_f32 v%d, v%d, v%d" % (16 + r, 16 + r, 24 + r))
    a("v_cvt_pk_bf16_f32 v30, v16, v17")
    a("v_cvt_pk_bf16_f32 v31, v18, v19")
    for h in range(2):
        a("v_lshlrev_b32 v%d, 16, v%d" % (38 + 2 * h, 30 + h))
        a("v_and_b32 v%d, 0xffff0000, v%d" % (39 + 2 * h, 30 + h))
    for r in range(4):
        a("v_mul_f32 v%d, 0x%08x, v%d" % (42 + r, f2u(-1.4426950408889634), 38 + r))
    for r in range(4):
        a("v_exp_f32 v%d, v%d" % (42 + r, 42 + r))
    for r in range(4):
        a("v_add_f32 v%d, 1.0, v%d" % (42 + r, 42 + r))
    for r in range(4):
        a("v_rcp_f32 v%d, v%d" % (42 + r, 42 + r))
    a("s_nop 0")
    for r in range(4):
        a("v_mul_f32 v%d, v%d, v%d" % (42 + r, 42 + r, 38 + r))
    a("v_cvt_pk_bf16_f32 v30, v42, v43")
    a("v_cvt_pk_bf16_f32 v31, v44, v45")
    for h in range(2):
        a("v_lshlrev_b32 v%d, 16, v%d" % (42 + 2 * h, 30 + h))
        a("v_and_b32 v%d, 0xffff0000, v%d" % (43 + 2 * h, 30 + h))
    for r in range(4):
        a("v_mul_f32 v%d, v%d, v%d" % (42 + r, 42 + r, 34 + r))
    a("v_cvt_pk_bf16_f32 v30, v42, v43")
    a("v_cvt_pk_bf16_f32 v31, v44, v45")
    for h in range(2):
        a("v_lshlrev_b32 v%d, 16, v%d" % (42 + 2 * h, 30 + h))
        a("v_and_b32 v%d, 0xffff0000, v%d" % (43 + 2 * h, 30 + h))
        a("v_lshlrev_b32 v%d, 16, v%d" % (46 + 2 * h, 4 + h))
        a("v_and_b32 v%d, 0xffff0000, v%d" % (47 + 2 * h, 4 + h))
    for r in range(4):
        a("v_add_f32 v%d, v%d, v%d" % (42 + r, 42 + r, 46 + r))
    a("v_cvt_pk_bf16_f32 v30, v42, v43")
    a("v_cvt_pk_bf16_f32 v31, v44, v45")
    a("buffer_store_dwordx2 v[30:31], v3, s[16:19], 0 offen")
    a("s_waitcnt vmcnt(0)")
    a.label("k3_done")
    a("s_endpgm")
    return name, 56


def main():
    a = Asm()
    hdr = open("cdna_kernels/%s.s.ref" % NAME).read().split("; Override")[0]
    a.raw(hdr.rstrip("\n"))
    a.raw("; @launch kernel=ln_kernel grid=(512,1,1) block=(256,1,1) lds=0")
    a.raw("; @launch kernel=gemm1_kernel grid=(1296,1,1) block=(256,1,1) lds=65536")
    a.raw("; @launch kernel=gemm2_kernel grid=(240,1,1) block=(256,1,1) lds=81920")
    a.raw("; @launch kernel=final_kernel grid=(1152,1,1) block=(256,1,1) lds=0")
    a.raw('.amdgcn_target "amdgcn-amd-amdhsa--gfx950"')
    a.raw(".text")
    ks = [gen_k0(a), gen_k1(a), gen_k2(a), gen_k3(a)]
    a.raw('.section .rodata,"a"')
    for n, v in ks:
        kernel_desc(a, n, v)
    out = sys.argv[1] if len(sys.argv) > 1 else "cdna_kernels/%s.s" % NAME
    open(out, "w").write("\n".join(a.lines) + "\n")


if __name__ == "__main__":
    main()
```

```python
import struct
import sys

NAME = "recurrent_scan__spectral_fnet__glu_gated_glu__prompt"
S, D, F = 2048, 576, 4608

WS_XN = 0
WS_AT = 4 << 20
WS_BT = 8 << 20
WS_H = 16 << 20
WS_P = 40 << 20
P_STRIDE = 8 << 20

KA_X, KA_CR, KA_CI, KA_WDR, KA_WDI, KA_BX, KA_WG, KA_WU, KA_WD, KA_OUT, KA_DBG, KA_WS = [8 * i for i in range(12)]


def f2u(x):
    return struct.unpack("<I", struct.pack("<f", x))[0]


import os
K1_HEAD = int(os.environ.get('K1_HEAD', 8))
K2_HEAD = int(os.environ.get('K2_HEAD', 2))
K1_NS = int(os.environ.get('K1_NS', 2))
K2_NS = int(os.environ.get('K2_NS', 4))


class Asm:
    def __init__(self):
        self.lines = []
        self.uid = 0

    def __call__(self, s):
        self.lines.append("    " + s)

    def label(self, s):
        self.lines.append(s + ":")

    def c(self, s):
        self.lines.append("    ; " + s)

    def raw(self, s):
        self.lines.append(s)

    def newlabel(self, p="L"):
        self.uid += 1
        return "%s_%d" % (p, self.uid)


def kernel_header(a, name):
    a.raw(".globl %s" % name)
    a.raw(".p2align 8")
    a.raw(".type %s,@function" % name)
    a.label(name)


def kernel_desc(a, name, vgpr, sgpr=102):
    a.raw(".p2align 6")
    a.raw(".amdhsa_kernel %s" % name)
    a.raw("  .amdhsa_next_free_vgpr %d" % vgpr)
    a.raw("  .amdhsa_next_free_sgpr %d" % sgpr)
    a.raw("  .amdhsa_accum_offset %d" % (((vgpr + 3) // 4) * 4))
    a.raw("  .amdhsa_group_segment_fixed_size 0")
    a.raw("  .amdhsa_kernarg_size 96")
    a.raw("  .amdhsa_user_sgpr_count 2")
    a.raw("  .amdhsa_user_sgpr_kernarg_segment_ptr 1")
    a.raw("  .amdhsa_system_sgpr_workgroup_id_x 1")
    a.raw(".end_amdhsa_kernel")


def srd(a, d, blo, off, size):
    if off:
        a("s_add_u32 s%d, s%d, 0x%x" % (d, blo, off))
        a("s_addc_u32 s%d, s%d, 0" % (d + 1, blo + 1))
    else:
        a("s_mov_b32 s%d, s%d" % (d, blo))
        a("s_mov_b32 s%d, s%d" % (d + 1, blo + 1))
    a("s_and_b32 s%d, s%d, 0xffff" % (d + 1, d + 1))
    a("s_mov_b32 s%d, 0x%x" % (d + 2, size))
    a("s_mov_b32 s%d, 0x00020000" % (d + 3))


def gen_k0(a):
    name = "ln_kernel"
    kernel_header(a, name)
    a("s_cmp_ge_u32 s2, 512")
    a("s_cbranch_scc1 ln_done")
    a("s_load_dwordx2 s[4:5], s[0:1], %d" % KA_X)
    a("s_load_dwordx2 s[6:7], s[0:1], %d" % KA_WS)
    a("v_lshrrev_b32 v1, 6, v0")
    a("v_and_b32 v2, 63, v0")
    a("s_lshl_b32 s3, s2, 2")
    a("v_add_u32 v1, s3, v1")
    a("s_movk_i32 s3, 1152")
    a("v_mul_lo_u32 v3, s3, v1")
    a("v_lshl_add_u32 v3, v2, 2, v3")
    a("s_waitcnt lgkmcnt(0)")
    srd(a, 8, 4, 0, S * D * 2)
    srd(a, 12, 6, WS_XN, S * D * 2)
    a("v_mov_b32 v14, 0")
    for j in range(4):
        a("buffer_load_dword v%d, v3, s[8:11], 0 offen offset:%d" % (10 + j, 256 * j))
    a("v_cmp_gt_u32 vcc, 32, v2")
    a("s_and_saveexec_b64 s[16:17], vcc")
    a("buffer_load_dword v14, v3, s[8:11], 0 offen offset:1024")
    a("s_mov_b64 exec, s[16:17]")
    a("s_waitcnt vmcnt(0)")
    for j in range(5):
        a("v_lshlrev_b32 v%d, 16, v%d" % (20 + 2 * j, 10 + j))
        a("v_and_b32 v%d, 0xffff0000, v%d" % (21 + 2 * j, 10 + j))
    a("v_add_f32 v30, v20, v21")
    for j in range(2, 10):
        a("v_add_f32 v30, v30, v%d" % (20 + j))

    def wave_sum(v):
        for off in (0x041F, 0x081F, 0x101F, 0x201F, 0x401F):
            a("ds_swizzle_b32 v31, v%d offset:0x%x" % (v, off))
            a("s_waitcnt lgkmcnt(0)")
            a("v_add_f32 v%d, v%d, v31" % (v, v))
        a("s_nop 0")
        a("v_readlane_b32 s18, v%d, 0" % v)
        a("v_readlane_b32 s19, v%d, 32" % v)
        a("s_nop 1")
        a("v_mov_b32 v%d, s18" % v)
        a("v_add_f32 v%d, s19, v%d" % (v, v))

    wave_sum(30)
    a("v_mul_f32 v30, 0x%08x, v30" % f2u(1.0 / 576))
    a("v_cmp_gt_u32 vcc, 32, v2")
    for j in range(10):
        a("v_sub_f32 v%d, v%d, v30" % (40 + j, 20 + j))
    a("v_cndmask_b32 v48, 0, v48, vcc")
    a("v_cndmask_b32 v49, 0, v49, vcc")
    a("v_mul_f32 v32, v40, v40")
    for j in range(1, 10):
        a("v_fmac_f32 v32, v%d, v%d" % (40 + j, 40 + j))
    wave_sum(32)
    a("v_mul_f32 v32, 0x%08x, v32" % f2u(1.0 / 576))
    a("v_cvt_pk_bf16_f32 v33, v30, v32")
    a("v_lshlrev_b32 v34, 16, v33")
    a("v_and_b32 v35, 0xffff0000, v33")
    a("v_add_f32 v35, 0x%08x, v35" % f2u(1e-5))
    a("v_cvt_pk_bf16_f32 v35, v35, v35")
    a("v_lshlrev_b32 v35, 16, v35")
    a("v_sqrt_f32 v35, v35")
    a("s_nop 0")
    a("v_cvt_pk_bf16_f32 v35, v35, v35")
    a("v_lshlrev_b32 v35, 16, v35")
    a("v_rcp_f32 v36, v35")
    for j in range(10):
        a("v_sub_f32 v%d, v%d, v34" % (40 + j, 20 + j))
    for j in range(5):
        a("v_cvt_pk_bf16_f32 v%d, v%d, v%d" % (50 + j, 40 + 2 * j, 41 + 2 * j))
    for j in range(5):
        a("v_lshlrev_b32 v%d, 16, v%d" % (40 + 2 * j, 50 + j))
        a("v_and_b32 v%d, 0xffff0000, v%d" % (41 + 2 * j, 50 + j))
    for j in range(10):
        a("v_mul_f32 v%d, v%d, v36" % (60 + j, 40 + j))
    for j in range(10):
        a("v_fma_f32 v%d, -v%d, v35, v%d" % (70 + j, 60 + j, 40 + j))
    for j in range(10):
        a("v_fmac_f32 v%d, v%d, v36" % (60 + j, 70 + j))
    for j in range(5):
        a("v_cvt_pk_bf16_f32 v%d, v%d, v%d" % (50 + j, 60 + 2 * j, 61 + 2 * j))
    for j in range(4):
        a("buffer_store_dword v%d, v3, s[12:15], 0 offen offset:%d" % (50 + j, 256 * j))
    a("v_cmp_gt_u32 vcc, 32, v2")
    a("s_and_saveexec_b64 s[16:17], vcc")
    a("buffer_store_dword v54, v3, s[12:15], 0 offen offset:1024")
    a("s_mov_b64 exec, s[16:17]")
    a("s_waitcnt vmcnt(0)")
    a.label("ln_done")
    a("s_endpgm")
    return name, 80


S_SRDA, S_SRDB, S_SRDO = 8, 12, 16
S_AOFF, S_BOFF = 20, 24
S_M0A, S_M0B, S_W, S_CNT = 30, 31, 32, 33
S_T = 34
V_LANE, V_ADMA, V_BDMA, V_ARD, V_BRD = 10, 11, 12, 14, 16
V_ACC = 32


class Cfg:
    pass


def dma_pieces(cfg, stage):
    stg = stage * cfg.stage_bytes
    ps = []
    for j in range(4):
        ps.append(["s_add_u32 m0, s%d, %d" % (S_M0A, stg + j * 1024),
                   "s_nop 0",
                   "buffer_load_dwordx4 v%d, s[%d:%d], s%d offen lds" % (V_ADMA, S_SRDA, S_SRDA + 3, S_AOFF + j),
                   "s_add_u32 s%d, s%d, 128" % (S_AOFF + j, S_AOFF + j)])
    for j in range(cfg.nb):
        v = V_BDMA + (j & 1 if cfg.btype == 'tr' else 0)
        ps.append(["s_add_u32 m0, s%d, %d" % (S_M0B, stg + j * 1024),
                   "s_nop 0",
                   "buffer_load_dwordx4 v%d, s[%d:%d], s%d offen lds" % (v, S_SRDB, S_SRDB + 3, S_BOFF + j),
                   "s_add_u32 s%d, s%d, %d" % (S_BOFF + j, S_BOFF + j, cfg.bstep)])
    return ps


def dma_issue(a, cfg, stage):
    for p in dma_pieces(cfg, stage):
        for l in p:
            a(l)


def stage_compute(a, cfg, stage, pieces=()):
    pieces = list(pieces)
    stg = stage * cfg.stage_bytes
    VA, VB = V_ARD, V_BRD
    if stage >= 2:
        stg -= 2 * cfg.stage_bytes
        VA, VB = V_ARD + 8, V_BRD + 8
    nbf = cfg.nbf
    vfrag = V_ACC + 16 * nbf
    for kk in range(2):
        fa = vfrag + kk * (16 + 4 * nbf)
        fb = fa + 16
        for mt in range(4):
            a("ds_read_b128 v[%d:%d], v%d offset:%d" % (fa + 4 * mt, fa + 4 * mt + 3, VA + kk, stg + mt * 2048))
        for nf in range(nbf):
            if cfg.btype == 'tr':
                for h in range(2):
                    a("ds_read_b64_tr_b16 v[%d:%d], v%d offset:%d" % (
                        fb + 4 * nf + 2 * h, fb + 4 * nf + 2 * h + 1,
                        VB + cfg.brd_idx[nf], stg + cfg.brd_off[nf] + kk * 4096 + h * 512))
            else:
                a("ds_read_b128 v[%d:%d], v%d offset:%d" % (fb + 4 * nf, fb + 4 * nf + 3, VB + kk,
                                                            stg + cfg.brd_off[nf]))
    nreads = 4 + (2 * nbf if cfg.btype == 'tr' else nbf)
    nreads = min(nreads, 15)
    for _ in range(min(cfg.head, len(pieces))):
        for l in pieces.pop(0):
            a(l)
    nm = 8 * nbf
    gap = max(1, (nm - 2) // max(1, len(pieces))) if pieces else 0
    cnt = 0
    for kk in range(2):
        a("s_waitcnt lgkmcnt(%d)" % (nreads if kk == 0 else 0))
        fa = vfrag + kk * (16 + 4 * nbf)
        fb = fa + 16
        for mt in range(4):
            for nf in range(nbf):
                acc = V_ACC + 4 * (mt * nbf + nf)
                A = "v[%d:%d]" % (fa + 4 * mt, fa + 4 * mt + 3)
                B = "v[%d:%d]" % (fb + 4 * nf, fb + 4 * nf + 3)
                if cfg.swap:
                    A, B = B, A
                a("v_mfma_f32_16x16x32_bf16 v[%d:%d], %s, %s, v[%d:%d]" % (acc, acc + 3, A, B, acc, acc + 3))
                cnt += 1
                if pieces and cnt % gap == 0:
                    for l in pieces.pop(0):
                        a(l)
    for p in pieces:
        for l in p:
            a(l)


def mainloop(a, cfg, niter):
    NS = cfg.nstage
    nl = 4 + cfg.nb
    for i in range(8):
        a("v_add_u32 v%d, 0x%x, v%d" % (V_ARD + 8 + i, 2 * cfg.stage_bytes, V_ARD + i))
    for i in range(cfg.nbf * 16):
        a("v_mov_b32 v%d, 0" % (V_ACC + i))
    for p in range(NS - 1):
        dma_issue(a, cfg, p)
    it = 0
    nsteady = niter - (NS - 1)
    ngroups = nsteady // NS
    if ngroups > 1:
        a("s_mov_b32 s%d, 0" % S_CNT)
        lab = a.newlabel("kloop")
        a.label(lab)
        for st in range(NS):
            a("s_waitcnt vmcnt(%d)" % ((NS - 2) * nl))
            a("s_barrier")
            stage_compute(a, cfg, st, dma_pieces(cfg, (st + NS - 1) % NS))
        a("s_add_u32 s%d, s%d, 1" % (S_CNT, S_CNT))
        a("s_cmp_lt_u32 s%d, %d" % (S_CNT, ngroups))
        a("s_cbranch_scc1 %s" % lab)
        it = NS * ngroups
    while it < niter:
        st = it % NS
        if it < nsteady:
            a("s_waitcnt vmcnt(%d)" % ((NS - 2) * nl))
        else:
            a("s_waitcnt vmcnt(%d)" % ((niter - 1 - it) * nl))
        a("s_barrier")
        stage_compute(a, cfg, st, dma_pieces(cfg, (st + NS - 1) % NS) if it < nsteady else ())
        it += 1
    a("s_nop 7")
    a("s_nop 7")


def lane_setup_common(a):
    a("v_lshrrev_b32 v1, 6, v0")
    a("v_and_b32 v%d, 63, v0" % V_LANE)
    a("v_readfirstlane_b32 s%d, v1" % S_W)
    L = V_LANE
    a("v_and_b32 v1, 15, v%d" % L)
    a("v_lshlrev_b32 v1, 7, v1")
    a("v_lshrrev_b32 v2, 4, v%d" % L)
    a("v_and_b32 v3, 7, v%d" % L)
    a("v_xor_b32 v2, v2, v3")
    a("v_lshl_add_u32 v9, v2, 4, v1")
    a("s_lshr_b32 s%d, s%d, 1" % (S_T, S_W))
    a("s_lshl_b32 s%d, s%d, 13" % (S_T, S_T))
    a("v_add_u32 v%d, s%d, v9" % (V_ARD, S_T))
    a("v_xor_b32 v%d, 64, v%d" % (V_ARD + 1, V_ARD))
    a("s_lshl_b32 s%d, s%d, 12" % (S_M0A, S_W))


def a_dma_setup(a, a_stride, s_mrow, kbyte0):
    L = V_LANE
    a("v_lshrrev_b32 v1, 3, v%d" % L)
    a("v_and_b32 v2, 7, v%d" % L)
    a("v_xor_b32 v2, v2, v1")
    a("v_lshlrev_b32 v2, 4, v2")
    a("s_lshl_b32 s%d, s%d, 5" % (S_T, S_W))
    a("v_add_u32 v3, s%d, v1" % S_T)
    a("s_mov_b32 s%d, %d" % (S_T, a_stride))
    a("v_mul_lo_u32 v3, s%d, v3" % S_T)
    a("v_add_u32 v%d, v3, v2" % V_ADMA)
    a("s_mul_i32 s%d, s%d, %d" % (S_T, s_mrow, a_stride))
    for j in range(4):
        a("s_add_u32 s%d, s%d, %d" % (S_AOFF + j, S_T, 8 * j * a_stride + kbyte0))


def b_kc_setup(a, cfg, b_stride, s_brow, kbyte0, wave_rd_shift_rows):
    a("s_mov_b32 s%d, %d" % (S_T, b_stride))
    a("v_mul_lo_u32 v3, s%d, v1" % S_T)
    a("v_add_u32 v%d, v3, v2" % V_BDMA)
    a("s_mul_i32 s%d, s%d, %d" % (S_T, s_brow, b_stride))
    for j in range(cfg.nb):
        a("s_add_u32 s%d, s%d, %d" % (S_BOFF + j, S_T, 8 * j * b_stride + kbyte0))
    a("s_and_b32 s%d, s%d, 1" % (S_T, S_W))
    a("s_mul_i32 s%d, s%d, %d" % (S_T, S_T, wave_rd_shift_rows * 128))
    a("s_add_u32 s%d, s%d, 16384" % (S_T, S_T))
    a("v_add_u32 v%d, s%d, v9" % (V_BRD, S_T))
    a("v_xor_b32 v%d, 64, v%d" % (V_BRD + 1, V_BRD))
    a("s_mul_i32 s%d, s%d, %d" % (S_M0B, S_W, cfg.nb * 1024))
    a("s_add_u32 s%d, s%d, 16384" % (S_M0B, S_M0B))


def b_tr_lane_setup(a, cfg, b_stride):
    L = V_LANE
    a("v_lshrrev_b32 v1, 3, v%d" % L)
    a("s_mov_b32 s%d, %d" % (S_T, b_stride))
    a("v_mul_lo_u32 v3, s%d, v1" % S_T)
    a("v_and_b32 v4, 2, v1")
    a("v_and_b32 v5, 7, v%d" % L)
    a("v_xor_b32 v5, v5, v4")
    a("v_lshl_add_u32 v%d, v5, 4, v3" % V_BDMA)
    a("v_xor_b32 v%d, 64, v%d" % (V_BDMA + 1, V_BDMA))
    a("v_and_b32 v4, 15, v%d" % L)
    a("v_lshrrev_b32 v5, 4, v%d" % L)
    a("v_lshrrev_b32 v6, 2, v4")
    a("v_lshl_add_u32 v7, v5, 3, v6")
    a("v_lshlrev_b32 v7, 7, v7")
    a("v_and_b32 v6, 2, v6")
    a("v_and_b32 v5, 1, v5")
    a("v_lshl_or_b32 v6, v5, 2, v6")
    a("v_bfe_u32 v5, v4, 1, 1")
    a("v_xor_b32 v5, v5, v6")
    a("v_lshl_add_u32 v7, v5, 4, v7")
    a("v_and_b32 v5, 1, v4")
    a("v_lshl_add_u32 v8, v5, 3, v7")
    a("v_add_u32 v8, 0x4000, v8")
    a("s_mul_i32 s%d, s%d, %d" % (S_M0B, S_W, cfg.nb * 1024))
    a("s_add_u32 s%d, s%d, 16384" % (S_M0B, S_M0B))


def bf16_round_pair(a, dst, x0, x1):
    a("v_cvt_pk_bf16_f32 v%d, v%d, v%d" % (dst, x0, x1))


def gen_k1(a):
    name = "gemm1_kernel"
    kernel_header(a, name)
    a("s_cmp_ge_u32 s2, 1296")
    a("s_cbranch_scc1 k1_done")
    a("s_load_dwordx2 s[4:5], s[0:1], %d" % KA_WS)
    a("s_load_dwordx4 s[40:43], s[0:1], %d" % KA_WDR)
    a("s_load_dwordx4 s[44:47], s[0:1], %d" % KA_WG)
    lane_setup_common(a)
    a("s_waitcnt lgkmcnt(0)")
    srd(a, S_SRDA, 4, WS_XN, S * D * 2)
    a("s_cmp_ge_u32 s2, 144")
    a("s_cbranch_scc1 k1_gu")

    cfg = Cfg()
    cfg.stage_bytes = 32768
    cfg.nstage = K1_NS
    cfg.head = K1_HEAD
    cfg.nb = 4
    cfg.nbf = 4
    cfg.btype = 'kc'
    cfg.bstep = 128
    cfg.swap = False
    cfg.brd_off = [(64 * ri + 16 * nt) * 128 for ri in range(2) for nt in range(2)]
    a("s_and_b32 s36, s2, 15")
    a("s_lshl_b32 s36, s36, 7")
    a("s_lshr_b32 s37, s2, 4")
    a("s_lshl_b32 s37, s37, 6")
    a("s_cmp_ge_u32 s%d, 2" % S_W)
    a("s_cselect_b32 s6, s42, s40")
    a("s_cselect_b32 s7, s43, s41")
    srd(a, S_SRDB, 6, 0, D * D * 2)
    a_dma_setup(a, 1152, 36, 0)
    a("s_and_b32 s38, s%d, 1" % S_W)
    a("s_lshl_b32 s38, s38, 5")
    a("s_add_u32 s38, s38, s37")
    b_kc_setup(a, cfg, 1152, 38, 0, 32)
    mainloop(a, cfg, 9)
    srd(a, S_SRDO, 4, WS_AT, (WS_BT - WS_AT) + S * D * 2)
    L = V_LANE
    a("v_and_b32 v1, 15, v%d" % L)
    a("s_and_b32 s38, s%d, 1" % S_W)
    a("s_lshl_b32 s38, s38, 5")
    a("s_add_u32 s38, s38, s37")
    a("v_add_u32 v1, s38, v1")
    a("v_lshlrev_b32 v1, 12, v1")
    a("v_lshrrev_b32 v2, 4, v%d" % L)
    a("v_lshlrev_b32 v2, 3, v2")
    a("s_lshr_b32 s39, s%d, 1" % S_W)
    a("s_lshl_b32 s39, s39, 6")
    a("s_add_u32 s39, s39, s36")
    a("s_lshl_b32 s39, s39, 1")
    a("v_add3_u32 v1, v1, v2, s39")
    for mt in range(4):
        for ri in range(2):
            for nt in range(2):
                acc = V_ACC + 4 * (mt * 4 + ri * 2 + nt)
                a("v_cvt_pk_bf16_f32 v%d, v%d, v%d" % (100, acc, acc + 1))
                a("v_cvt_pk_bf16_f32 v%d, v%d, v%d" % (101, acc + 2, acc + 3))
                a("s_mov_b32 s%d, %d" % (S_T, ri * (WS_BT - WS_AT) + nt * 16 * 4096 + mt * 32))
                a("buffer_store_dwordx2 v[100:101], v1, s[%d:%d], s%d offen" % (S_SRDO, S_SRDO + 3, S_T))
                a("s_nop 0")
    a("s_waitcnt vmcnt(0)")
    a("s_endpgm")

    a.label("k1_gu")
    cfg = Cfg()
    cfg.stage_bytes = 32768
    cfg.nstage = K1_NS
    cfg.head = K1_HEAD
    cfg.nb = 4
    cfg.nbf = 4
    cfg.btype = 'tr'
    cfg.bstep = 64 * 9216
    cfg.swap = True
    cfg.brd_idx = [nt for gu in range(2) for nt in range(2)]
    cfg.brd_off = [gu * 8192 for gu in range(2) for nt in range(2)]
    a("s_sub_u32 s34, s2, 144")
    a("s_and_b32 s35, s34, 7")
    a("s_lshr_b32 s34, s34, 3")
    a("s_mul_i32 s36, s34, 7282")
    a("s_lshr_b32 s36, s36, 16")
    a("s_mul_i32 s37, s36, 9")
    a("s_sub_u32 s37, s34, s37")
    a("s_lshl_b32 s37, s37, 3")
    a("s_add_u32 s37, s37, s35")
    a("s_lshl_b32 s36, s36, 7")
    a("s_lshl_b32 s37, s37, 6")
    a("s_cmp_ge_u32 s%d, 2" % S_W)
    a("s_cselect_b32 s6, s46, s44")
    a("s_cselect_b32 s7, s47, s45")
    srd(a, S_SRDB, 6, 0, D * F * 2)
    a_dma_setup(a, 1152, 36, 0)
    b_tr_lane_setup(a, cfg, 9216)
    a("s_and_b32 s38, s%d, 1" % S_W)
    a("s_mul_i32 s38, s38, %d" % (32 * 9216))
    a("s_lshl_b32 s39, s37, 1")
    a("s_add_u32 s38, s38, s39")
    for j in range(4):
        a("s_add_u32 s%d, s38, %d" % (S_BOFF + j, 8 * j * 9216))
    a("s_and_b32 s38, s%d, 1" % S_W)
    a("s_lshl_b32 s38, s38, 6")
    a("v_xor_b32 v%d, s38, v8" % V_BRD)
    a("v_xor_b32 v%d, 32, v%d" % (V_BRD + 1, V_BRD))
    mainloop(a, cfg, 9)
    srd(a, S_SRDO, 4, WS_H, S * F * 2)
    L = V_LANE
    a("v_and_b32 v1, 15, v%d" % L)
    a("s_lshr_b32 s39, s%d, 1" % S_W)
    a("s_lshl_b32 s39, s39, 6")
    a("s_add_u32 s39, s39, s36")
    a("v_add_u32 v1, s39, v1")
    a("s_movk_i32 s39, 9216")
    a("v_mul_lo_u32 v1, s39, v1")
    a("v_lshrrev_b32 v2, 4, v%d" % L)
    a("v_lshlrev_b32 v2, 3, v2")
    a("s_and_b32 s38, s%d, 1" % S_W)
    a("s_lshl_b32 s38, s38, 5")
    a("s_add_u32 s38, s38, s37")
    a("s_lshl_b32 s38, s38, 1")
    a("v_add3_u32 v1, v1, v2, s38")
    T = 100
    for mt in range(4):
        for nt in range(2):
            g = V_ACC + 4 * (mt * 4 + nt)
            u = V_ACC + 4 * (mt * 4 + 2 + nt)
            a("v_cvt_pk_bf16_f32 v%d, v%d, v%d" % (T, g, g + 1))
            a("v_cvt_pk_bf16_f32 v%d, v%d, v%d" % (T + 1, g + 2, g + 3))
            a("v_cvt_pk_bf16_f32 v%d, v%d, v%d" % (T + 2, u, u + 1))
            a("v_cvt_pk_bf16_f32 v%d, v%d, v%d" % (T + 3, u + 2, u + 3))
            a("v_lshlrev_b32 v%d, 16, v%d" % (T + 4, T))
            a("v_and_b32 v%d, 0xffff0000, v%d" % (T + 5, T))
            a("v_lshlrev_b32 v%d, 16, v%d" % (T + 6, T + 1))
            a("v_and_b32 v%d, 0xffff0000, v%d" % (T + 7, T + 1))
            for r in range(4):
                a("v_mul_f32 v%d, 0x%08x, v%d" % (T + 4 + r, f2u(-1.4426950408889634), T + 4 + r))
            for r in range(4):
                a("v_exp_f32 v%d, v%d" % (T + 4 + r, T + 4 + r))
            for r in range(4):
                a("v_add_f32 v%d, 1.0, v%d" % (T + 4 + r, T + 4 + r))
            for r in range(4):
                a("v_rcp_f32 v%d, v%d" % (T + 4 + r, T + 4 + r))
            a("s_nop 0")
            a("v_cvt_pk_bf16_f32 v%d, v%d, v%d" % (T, T + 4, T + 5))
            a("v_cvt_pk_bf16_f32 v%d, v%d, v%d" % (T + 1, T + 6, T + 7))
            a("v_lshlrev_b32 v%d, 16, v%d" % (T + 4, T))
            a("v_and_b32 v%d, 0xffff0000, v%d" % (T + 5, T))
            a("v_lshlrev_b32 v%d, 16, v%d" % (T + 6, T + 1))
            a("v_and_b32 v%d, 0xffff0000, v%d" % (T + 7, T + 1))
            a("v_lshlrev_b32 v%d, 16, v%d" % (T + 8, T + 2))
            a("v_and_b32 v%d, 0xffff0000, v%d" % (T + 9, T + 2))
            a("v_lshlrev_b32 v%d, 16, v%d" % (T + 10, T + 3))
            a("v_and_b32 v%d, 0xffff0000, v%d" % (T + 11, T + 3))
            for r in range(4):
                a("v_mul_f32 v%d, v%d, v%d" % (T + 4 + r, T + 4 + r, T + 8 + r))
            a("v_cvt_pk_bf16_f32 v%d, v%d, v%d" % (T + 12, T + 4, T + 5))
            a("v_cvt_pk_bf16_f32 v%d, v%d, v%d" % (T + 13, T + 6, T + 7))
            a("s_mov_b32 s%d, %d" % (S_T, mt * 16 * 9216 + nt * 32))
            a("buffer_store_dwordx2 v[%d:%d], v1, s[%d:%d], s%d offen" % (T + 12, T + 13, S_SRDO, S_SRDO + 3, S_T))
    a("s_waitcnt vmcnt(0)")
    a.label("k1_done")
    a("s_endpgm")
    return name, 160


def gen_k2(a):
    name = "gemm2_kernel"
    kernel_header(a, name)
    a("s_cmp_ge_u32 s2, 240")
    a("s_cbranch_scc1 k2_done")
    a("s_load_dwordx2 s[4:5], s[0:1], %d" % KA_WS)
    a("s_load_dwordx4 s[40:43], s[0:1], %d" % KA_CR)
    a("s_load_dwordx2 s[44:45], s[0:1], %d" % KA_WD)
    lane_setup_common(a)
    a("s_and_b32 s34, s2, 7")
    a("s_lshr_b32 s35, s2, 3")
    a("s_mul_i32 s36, s35, 21846")
    a("s_lshr_b32 s36, s36, 16")
    a("s_mul_i32 s37, s36, 3")
    a("s_sub_u32 s37, s35, s37")
    a("s_mul_i32 s37, s37, 192")
    a("s_mul_i32 s34, s34, 10")
    a("s_add_u32 s34, s34, s36")
    a("s_and_b32 s36, s34, 15")
    a("s_lshl_b32 s36, s36, 7")
    a("s_lshr_b32 s48, s34, 4")
    a("s_waitcnt lgkmcnt(0)")
    a("s_cmp_ge_u32 s48, 2")
    a("s_cbranch_scc1 k2_dn")

    cfg = Cfg()
    cfg.stage_bytes = 40960
    cfg.nstage = K2_NS
    cfg.head = K2_HEAD
    cfg.nb = 6
    cfg.nbf = 6
    cfg.btype = 'kc'
    cfg.bstep = 128
    cfg.swap = True
    cfg.brd_off = [nt * 2048 for nt in range(6)]
    a("s_cmp_eq_u32 s48, 1")
    a("s_cselect_b32 s6, s42, s40")
    a("s_cselect_b32 s7, s43, s41")
    srd(a, S_SRDA, 6, 0, S * S * 2)
    a("s_mul_i32 s38, s48, %d" % (WS_BT - WS_AT))
    a("s_add_u32 s6, s4, s38")
    a("s_addc_u32 s7, s5, 0")
    srd(a, S_SRDB, 6, WS_AT, S * D * 2)
    a_dma_setup(a, 4096, 36, 0)
    a("s_mul_i32 s38, s%d, 48" % S_W)
    a("s_add_u32 s38, s38, s37")
    b_kc_setup(a, cfg, 4096, 38, 0, 96)
    mainloop(a, cfg, 32)
    a("s_branch k2_store")

    a.label("k2_dn")
    cfg = Cfg()
    cfg.stage_bytes = 40960
    cfg.nstage = K2_NS
    cfg.head = K2_HEAD
    cfg.nb = 6
    cfg.nbf = 6
    cfg.btype = 'tr'
    cfg.bstep = 64 * 1152
    cfg.swap = True
    cfg.brd_idx = list(range(6))
    cfg.brd_off = [0] * 6
    srd(a, S_SRDA, 4, WS_H, S * F * 2)
    srd(a, S_SRDB, 44, 0, F * D * 2)
    a("s_sub_u32 s49, s48, 2")
    a("s_mul_i32 s49, s49, 1536")
    a_dma_setup(a, 9216, 36, 0)
    a("s_lshl_b32 s38, s49, 1")
    for j in range(4):
        a("s_add_u32 s%d, s%d, s38" % (S_AOFF + j, S_AOFF + j))
    b_tr_lane_setup(a, cfg, 1152)
    for j in range(6):
        a("s_mul_i32 s38, s%d, 6" % S_W)
        a("s_add_u32 s38, s38, %d" % j)
        a("s_lshr_b32 s39, s38, 3")
        a("s_and_b32 s38, s38, 7")
        a("s_lshl_b32 s38, s38, 3")
        a("s_add_u32 s38, s38, s49")
        a("s_mul_i32 s38, s38, 1152")
        a("s_lshl_b32 s39, s39, 6")
        a("s_add_u32 s39, s39, s37")
        a("s_lshl_b32 s39, s39, 1")
        a("s_add_u32 s%d, s38, s39" % (S_BOFF + j))
    for nt in range(6):
        a("s_and_b32 s38, s%d, 1" % S_W)
        a("s_mul_i32 s38, s38, 96")
        a("s_add_u32 s38, s38, %d" % (16 * nt))
        a("s_lshr_b32 s39, s38, 6")
        a("s_lshl_b32 s39, s39, 13")
        a("s_and_b32 s38, s38, 63")
        a("s_lshl_b32 s38, s38, 1")
        a("v_xor_b32 v%d, s38, v8" % (V_BRD + nt))
        a("v_add_u32 v%d, s39, v%d" % (V_BRD + nt, V_BRD + nt))
    mainloop(a, cfg, 24)

    a.label("k2_store")
    a("s_mul_i32 s38, s48, %d" % P_STRIDE)
    a("s_add_u32 s6, s4, s38")
    a("s_addc_u32 s7, s5, 0")
    srd(a, S_SRDO, 6, WS_P, S * D * 4)
    L = V_LANE
    a("v_and_b32 v1, 15, v%d" % L)
    a("s_lshr_b32 s39, s%d, 1" % S_W)
    a("s_lshl_b32 s39, s39, 6")
    a("s_add_u32 s39, s39, s36")
    a("v_add_u32 v1, s39, v1")
    a("s_movk_i32 s39, 2304")
    a("v_mul_lo_u32 v1, s39, v1")
    a("v_lshrrev_b32 v2, 4, v%d" % L)
    a("v_lshlrev_b32 v2, 4, v2")
    a("s_and_b32 s38, s%d, 1" % S_W)
    a("s_mul_i32 s38, s38, 96")
    a("s_add_u32 s38, s38, s37")
    a("s_lshl_b32 s38, s38, 2")
    a("v_add3_u32 v1, v1, v2, s38")
    for mt in range(4):
        for nt in range(6):
            acc = V_ACC + 4 * (mt * 6 + nt)
            a("s_mov_b32 s%d, %d" % (S_T, mt * 16 * 2304 + nt * 64))
            a("buffer_store_dwordx4 v[%d:%d], v1, s[%d:%d], s%d offen" % (acc, acc + 3, S_SRDO, S_SRDO + 3, S_T))
    a("s_waitcnt vmcnt(0)")
    a.label("k2_done")
    a("s_endpgm")
    return name, 208


def gen_k3(a):
    name = "final_kernel"
    kernel_header(a, name)
    a("s_cmp_ge_u32 s2, 1152")
    a("s_cbranch_scc1 k3_done")
    a("s_load_dwordx2 s[4:5], s[0:1], %d" % KA_WS)
    a("s_load_dwordx2 s[6:7], s[0:1], %d" % KA_X)
    a("s_load_dwordx2 s[20:21], s[0:1], %d" % KA_OUT)
    a("s_lshl_b32 s3, s2, 8")
    a("v_add_u32 v1, s3, v0")
    a("v_lshlrev_b32 v2, 4, v1")
    a("v_lshlrev_b32 v3, 3, v1")
    a("s_waitcnt lgkmcnt(0)")
    srd(a, 8, 4, WS_P, 4 * P_STRIDE + S * D * 4)
    srd(a, 12, 6, 0, S * D * 2)
    srd(a, 16, 20, 0, S * D * 2)
    for p in range(5):
        a("s_mov_b32 s22, %d" % (p * P_STRIDE))
        a("buffer_load_dwordx4 v[%d:%d], v2, s[8:11], s22 offen" % (8 + 4 * p, 11 + 4 * p))
    a("buffer_load_dwordx2 v[4:5], v3, s[12:15], 0 offen")
    a("s_waitcnt vmcnt(0)")
    a("v_cvt_pk_bf16_f32 v30, v8, v9")
    a("v_cvt_pk_bf16_f32 v31, v10, v11")
    a("v_cvt_pk_bf16_f32 v32, v12, v13")
    a("v_cvt_pk_bf16_f32 v33, v14, v15")
    for h in range(2):
        a("v_lshlrev_b32 v%d, 16, v%d" % (34 + 2 * h, 30 + h))
        a("v_and_b32 v%d, 0xffff0000, v%d" % (35 + 2 * h, 30 + h))
        a("v_lshlrev_b32 v%d, 16, v%d" % (38 + 2 * h, 32 + h))
        a("v_and_b32 v%d, 0xffff0000, v%d" % (39 + 2 * h, 32 + h))
    for r in range(4):
        a("v_sub_f32 v%d, v%d, v%d" % (34 + r, 34 + r, 38 + r))
    a("v_cvt_pk_bf16_f32 v30, v34, v35")
    a("v_cvt_pk_bf16_f32 v31, v36, v37")
    for h in range(2):
        a("v_lshlrev_b32 v%d, 16, v%d" % (34 + 2 * h, 30 + h))
        a("v_and_b32 v%d, 0xffff0000, v%d" % (35 + 2 * h, 30 + h))
    for r in range(4):
        a("v_add_f32 v%d, v%d, v%d" % (16 + r, 16 + r, 20 + r))
    for r in range(4):
        a("v_add_f32 v%d, v%d, v%d" % (16 + r, 16 + r, 24 + r))
    a("v_cvt_pk_bf16_f32 v30, v16, v17")
    a("v_cvt_pk_bf16_f32 v31, v18, v19")
    for h in range(2):
        a("v_lshlrev_b32 v%d, 16, v%d" % (38 + 2 * h, 30 + h))
        a("v_and_b32 v%d, 0xffff0000, v%d" % (39 + 2 * h, 30 + h))
    for r in range(4):
        a("v_mul_f32 v%d, 0x%08x, v%d" % (42 + r, f2u(-1.4426950408889634), 38 + r))
    for r in range(4):
        a("v_exp_f32 v%d, v%d" % (42 + r, 42 + r))
    for r in range(4):
        a("v_add_f32 v%d, 1.0, v%d" % (42 + r, 42 + r))
    for r in range(4):
        a("v_rcp_f32 v%d, v%d" % (42 + r, 42 + r))
    a("s_nop 0")
    for r in range(4):
        a("v_mul_f32 v%d, v%d, v%d" % (42 + r, 42 + r, 38 + r))
    a("v_cvt_pk_bf16_f32 v30, v42, v43")
    a("v_cvt_pk_bf16_f32 v31, v44, v45")
    for h in range(2):
        a("v_lshlrev_b32 v%d, 16, v%d" % (42 + 2 * h, 30 + h))
        a("v_and_b32 v%d, 0xffff0000, v%d" % (43 + 2 * h, 30 + h))
    for r in range(4):
        a("v_mul_f32 v%d, v%d, v%d" % (42 + r, 42 + r, 34 + r))
    a("v_cvt_pk_bf16_f32 v30, v42, v43")
    a("v_cvt_pk_bf16_f32 v31, v44, v45")
    for h in range(2):
        a("v_lshlrev_b32 v%d, 16, v%d" % (42 + 2 * h, 30 + h))
        a("v_and_b32 v%d, 0xffff0000, v%d" % (43 + 2 * h, 30 + h))
        a("v_lshlrev_b32 v%d, 16, v%d" % (46 + 2 * h, 4 + h))
        a("v_and_b32 v%d, 0xffff0000, v%d" % (47 + 2 * h, 4 + h))
    for r in range(4):
        a("v_add_f32 v%d, v%d, v%d" % (42 + r, 42 + r, 46 + r))
    a("v_cvt_pk_bf16_f32 v30, v42, v43")
    a("v_cvt_pk_bf16_f32 v31, v44, v45")
    a("buffer_store_dwordx2 v[30:31], v3, s[16:19], 0 offen")
    a("s_waitcnt vmcnt(0)")
    a.label("k3_done")
    a("s_endpgm")
    return name, 56


def main():
    a = Asm()
    hdr = open("cdna_kernels/%s.s.ref" % NAME).read().split("; Override")[0]
    a.raw(hdr.rstrip("\n"))
    a.raw("; @launch kernel=ln_kernel grid=(512,1,1) block=(256,1,1) lds=0")
    a.raw("; @launch kernel=gemm1_kernel grid=(1296,1,1) block=(256,1,1) lds=%d" % (32768 * K1_NS))
    a.raw("; @launch kernel=gemm2_kernel grid=(240,1,1) block=(256,1,1) lds=%d" % (40960 * K2_NS))
    a.raw("; @launch kernel=final_kernel grid=(1152,1,1) block=(256,1,1) lds=0")
    a.raw('.amdgcn_target "amdgcn-amd-amdhsa--gfx950"')
    a.raw(".text")
    ks = [gen_k0(a), gen_k1(a), gen_k2(a), gen_k3(a)]
    a.raw('.section .rodata,"a"')
    for n, v in ks:
        kernel_desc(a, n, v)
    out = sys.argv[1] if len(sys.argv) > 1 else "cdna_kernels/%s.s" % NAME
    open(out, "w").write("\n".join(a.lines) + "\n")


if __name__ == "__main__":
    main()
```
